```python
import torch

def _softmax(x, axis=-1):
    return torch.softmax(x, dim=axis)
def _gelu(x):
    return torch.nn.functional.gelu(x, approximate="tanh")
def _silu(x):
    return torch.nn.functional.silu(x)
def _sigmoid(x):
    return torch.sigmoid(x)
def _layernorm(x, axis=-1, eps=1e-5):
    m = x.mean(dim=axis, keepdim=True)
    v = x.var(dim=axis, keepdim=True, unbiased=False)
    return (x - m) / torch.sqrt(v + eps)
def _scatter_add(tgt, idx, src, axis=0):
    return tgt.clone().index_add_(axis, idx, src)
def _segment_sum(src, seg, n):
    out = torch.zeros((n,) + src.shape[1:], dtype=src.dtype)
    return out.index_add_(0, seg, src)
def _pad(x, pw):
    flat = tuple(v for pair in reversed(pw) for v in pair)
    return torch.nn.functional.pad(x, flat)

kernel_name = 'standalone__fused_bias_dropout_add__prompt'

def setup_inputs():

    _w = (lambda a: (lambda t: t.to(torch.bfloat16) if t.is_floating_point() else t)(torch.as_tensor(a)))
    B, S, D = 4, 2048, 448
    keep = 0.9
    mask = (torch.rand(B, S, D) < keep).to(float)
    return {
        "x": _w((lambda *s: torch.randn(*s, dtype=torch.bfloat16) * 0.05)(B, S, D)),
        "bias": _w((lambda *s: torch.randn(*s, dtype=torch.bfloat16) * 0.05)(D)),
        "mask": _w(mask),
        "residual": _w((lambda *s: torch.randn(*s, dtype=torch.bfloat16) * 0.05)(B, S, D)),
    }

def reference(x, bias, mask, residual):
    keep = 0.9
    return residual + (x + bias) * mask * (1.0 / keep)
```

```python
import argparse, struct

NBYTES = 4*2048*448*2
ROWB = 896
HDR = open('standalone__fused_bias_dropout_add__prompt.s.ref').read().split('; Override launch')[0]
KN = 'standalone__fused_bias_dropout_add__prompt_kernel'

def f32bits(x):
    return struct.unpack('<I', struct.pack('<f', x))[0]

def gen(block=448, K=1, layout='contig', ldp='', stp='', biasp='', order='xmr'):
    cb = block*16
    assert NBYTES % (cb*K) == 0
    G = NBYTES // (cb*K)
    if layout == 'contig':
        stride = cb
        wgmul = cb*K
    else:
        stride = G*cb
        wgmul = cb
    assert stride % ROWB == 0 or K == 1
    L = []
    A = L.append
    A(HDR.rstrip('\n'))
    A(f'; @launch grid=({G},1,1) block=({block},1,1) lds=0')
    A('.amdgcn_target "amdgcn-amd-amdhsa--gfx950"')
    A('.text')
    A(f'.globl {KN}')
    A('.p2align 8')
    A(f'.type {KN},@function')
    A(f'{KN}:')
    A('    s_load_dwordx8 s[4:11], s[0:1], 0')
    A('    s_load_dwordx2 s[12:13], s[0:1], 32')
    A(f'    s_cmp_ge_u32 s2, {G}')
    A('    s_cbranch_scc1 L_end')
    A(f'    s_mul_i32 s3, s2, {wgmul}')
    A('    v_lshl_add_u32 v1, v0, 4, s3')
    if (wgmul % ROWB) == 0:
        for t in range(block):
            assert (t*1171) >> 16 == t//56
        A('    v_mul_u32_u24 v2, 0x493, v0')
        A('    v_lshrrev_b32 v2, 16, v2')
        A('    v_mul_u32_u24 v2, 56, v2')
        A('    v_sub_u32 v2, v0, v2')
        A('    v_lshlrev_b32 v2, 4, v2')
    else:
        magic = -(-(1 << 32)//56)
        for t in (0, 55, 56, 458751, 458752-56, 458752-57):
            assert (t*magic) >> 32 == t//56
        err = magic*56 - (1 << 32)
        assert err * 458752 < (1 << 32)
        A(f'    s_mov_b32 s14, {magic:#x}')
        A('    v_lshrrev_b32 v2, 4, v1')
        A('    v_mul_hi_u32 v3, v2, s14')
        A('    v_mul_u32_u24 v3, 56, v3')
        A('    v_sub_u32 v2, v2, v3')
        A('    v_lshlrev_b32 v2, 4, v2')
    offs = ['v1']
    for k in range(1, K):
        A(f'    v_add_u32 v{2+k}, {k*stride:#x}, v1')
        offs.append(f'v{2+k}')
    base = 2+K
    base = (base+1)//2*2
    vb = base
    vbf = vb+4
    vd = vbf+8
    vt = vd+12*K
    nv = vt+8
    A(f'    s_mov_b32 s14, {f32bits(1.0/0.9):#x}')
    A(f'    s_mov_b32 s15, s14')
    A(f'    s_mov_b32 s16, 0xffff0000')
    A('    s_waitcnt lgkmcnt(0)')
    A(f'    global_load_dwordx4 v[{vb}:{vb+3}], v2, s[6:7] {biasp}')
    for k in range(K):
        d = vd+12*k
        src = {'x': (d, 's[4:5]'), 'm': (d+4, 's[8:9]'), 'r': (d+8, 's[10:11]')}
        for c in order:
            r, s = src[c]
            A(f'    global_load_dwordx4 v[{r}:{r+3}], {offs[k]}, {s} {ldp}')
    A(f'    s_waitcnt vmcnt({3*K})')
    for j in range(4):
        A(f'    v_lshlrev_b32 v{vbf+2*j}, 16, v{vb+j}')
        A(f'    v_and_b32 v{vbf+2*j+1}, s16, v{vb+j}')
    for k in range(K):
        d = vd+12*k
        A(f'    s_waitcnt vmcnt({3*(K-1-k)+k})')
        for j in range(4):
            x, m, r = d+j, d+4+j, d+8+j
            t0 = vt + (j % 2)*4
            A(f'    v_lshlrev_b32 v{t0}, 16, v{x}')
            A(f'    v_and_b32 v{t0+1}, s16, v{x}')
            A(f'    v_lshlrev_b32 v{t0+2}, 16, v{m}')
            A(f'    v_and_b32 v{t0+3}, s16, v{m}')
            A(f'    v_pk_add_f32 v[{t0}:{t0+1}], v[{t0}:{t0+1}], v[{vbf+2*j}:{vbf+2*j+1}]')
            A(f'    v_pk_mul_f32 v[{t0}:{t0+1}], v[{t0}:{t0+1}], v[{t0+2}:{t0+3}]')
            A(f'    v_lshlrev_b32 v{t0+2}, 16, v{r}')
            A(f'    v_and_b32 v{t0+3}, s16, v{r}')
            A(f'    v_pk_fma_f32 v[{t0}:{t0+1}], v[{t0}:{t0+1}], s[14:15], v[{t0+2}:{t0+3}]')
            A(f'    v_cvt_pk_bf16_f32 v{x}, v{t0}, v{t0+1}')
        A(f'    global_store_dwordx4 {offs[k]}, v[{d}:{d+3}], s[12:13] {stp}')
    A('L_end:')
    A('    s_endpgm')
    A('.section .rodata,"a"')
    A('.p2align 6')
    A(f'.amdhsa_kernel {KN}')
    nvr = nv
    A(f'  .amdhsa_next_free_vgpr {nvr}')
    A('  .amdhsa_next_free_sgpr 24')
    A(f'  .amdhsa_accum_offset {(nvr+3)//4*4}')
    A('  .amdhsa_group_segment_fixed_size 0')
    A('  .amdhsa_kernarg_size 56')
    A('  .amdhsa_user_sgpr_count 2')
    A('  .amdhsa_user_sgpr_kernarg_segment_ptr 1')
    A('  .amdhsa_system_sgpr_workgroup_id_x 1')
    A('  .amdhsa_float_denorm_mode_32 3')
    A('.end_amdhsa_kernel')
    return '\n'.join(L)+'\n'

if __name__ == '__main__':
    p = argparse.ArgumentParser()
    p.add_argument('-o', required=True)
    p.add_argument('--block', type=int, default=448)
    p.add_argument('-K', type=int, default=1)
    p.add_argument('--layout', default='contig')
    p.add_argument('--ldp', default='')
    p.add_argument('--stp', default='')
    p.add_argument('--biasp', default='')
    a = p.parse_args()
    open(a.o, 'w').write(gen(a.block, a.K, a.layout, a.ldp, a.stp, a.biasp))
```

```python
import sys, re
sys.path.insert(0, 'gen')
KN = 'standalone__fused_bias_dropout_add__prompt_kernel'

def diag(src, sel, amp=20):
    m = re.search(r'; @launch grid=\((\d+),1,1\) block=\((\d+),1,1\) lds=(\d+)', src)
    G, B, lds = int(m.group(1)), int(m.group(2)), int(m.group(3))
    wpw = B//64
    NW = G*wpw
    src = src.replace(m.group(0), f'; @launch kernel={KN} grid=({G},1,1) block=({B},1,1) lds={lds}\n; @launch kernel=red_kernel grid=(1,1,1) block=(1024,1,1) lds=256')
    lines = src.split('\n')
    out = []
    nvm = 0
    first_lgkm = True
    last_ld_wait = None
    idx_vm = [i for i, l in enumerate(lines) if 's_waitcnt vmcnt' in l]
    for i, l in enumerate(lines):
        if l.startswith(KN+':'):
            out.append(l)
            out.append('    s_memrealtime s[40:41]')
            out.append('    s_load_dwordx2 s[38:39], s[0:1], 48')
            out.append('    v_lshrrev_b32 v63, 6, v0')
            out.append('    s_nop 0')
            out.append('    v_readfirstlane_b32 s50, v63')
            out.append(f'    s_mul_i32 s51, s2, {wpw}')
            out.append('    s_add_u32 s50, s50, s51')
            out.append('    s_lshl_b32 s50, s50, 5')
            continue
        if 's_waitcnt lgkmcnt(0)' in l and first_lgkm:
            first_lgkm = False
            out.append(l)
            out.append('    s_memrealtime s[42:43]')
            continue
        if i == idx_vm[0]:
            out.append(l)
            out.append('    s_memrealtime s[44:45]')
            if i != idx_vm[-1]:
                continue
            out.append('    s_memrealtime s[46:47]')
            continue
        if i == idx_vm[-1]:
            out.append(l)
            out.append('    s_memrealtime s[46:47]')
            continue
        if l.startswith('L_end:'):
            out.append('    s_waitcnt vmcnt(0)')
            out.append('    s_memrealtime s[48:49]')
            out.append('    s_waitcnt lgkmcnt(0)')
            out.append('    s_mov_b64 exec, 1')
            out.append('    v_mov_b32 v56, s40')
            out.append('    v_mov_b32 v57, s42')
            out.append('    v_mov_b32 v58, s44')
            out.append('    v_mov_b32 v59, s46')
            out.append('    v_mov_b32 v60, s48')
            out.append('    v_mov_b32 v61, s50')
            out.append('    global_store_dwordx4 v61, v[56:59], s[38:39]')
            out.append('    global_store_dword v61, v60, s[38:39] offset:16')
            out.append(l)
            continue
        if l.startswith('.section .rodata'):
            out.append(red(NW, sel, amp))
        l = re.sub(r'next_free_vgpr \d+', lambda mm: 'next_free_vgpr %d' % max(64, int(mm.group(0).split()[1])), l)
        l = re.sub(r'accum_offset \d+', lambda mm: 'accum_offset %d' % max(64, int(mm.group(0).split()[1])), l)
        l = re.sub(r'next_free_sgpr \d+', 'next_free_sgpr 56', l)
        out.append(l)
    out.append('''.amdhsa_kernel red_kernel
  .amdhsa_next_free_vgpr 32
  .amdhsa_next_free_sgpr 40
  .amdhsa_accum_offset 32
  .amdhsa_group_segment_fixed_size 0
  .amdhsa_kernarg_size 56
  .amdhsa_user_sgpr_count 2
  .amdhsa_user_sgpr_kernarg_segment_ptr 1
  .amdhsa_system_sgpr_workgroup_id_x 1
.end_amdhsa_kernel''')
    return '\n'.join(out)+'\n'

def red(NW, sel, amp):
    L = []
    A = L.append
    A('.globl red_kernel')
    A('.p2align 8')
    A('.type red_kernel,@function')
    A('red_kernel:')
    A('    s_memrealtime s[10:11]')
    A('    s_load_dwordx4 s[4:7], s[0:1], 40')
    A('    s_cmp_ge_u32 s2, 1')
    A('    s_cbranch_scc1 R_end')
    A('    v_lshlrev_b32 v1, 2, v0')
    A('    v_mov_b32 v2, 0')
    A('    v_cmp_le_u32 vcc, 8, v0')
    A('    v_cmp_gt_u32 s[12:13], 16, v0')
    A('    s_and_b64 vcc, vcc, s[12:13]')
    A('    s_nop 1')
    A('    v_cndmask_b32 v2, v2, -1, vcc')
    A('    v_cmp_gt_u32 vcc, 64, v0')
    A('    s_and_saveexec_b64 s[14:15], vcc')
    A('    ds_write_b32 v1, v2')
    A('    s_mov_b64 exec, s[14:15]')
    A('    s_waitcnt lgkmcnt(0)')
    A('    s_barrier')
    A('    v_mov_b32 v20, 0')
    A('    v_mov_b32 v3, v0')
    A('R_loop:')
    A(f'    v_cmp_gt_u32 vcc, {NW}, v3')
    A('    s_and_saveexec_b64 s[14:15], vcc')
    A('    s_cbranch_execz R_done')
    A('    v_lshlrev_b32 v4, 5, v3')
    A('    global_load_dwordx4 v[8:11], v4, s[6:7]')
    A('    global_load_dword v12, v4, s[6:7] offset:16')
    A('    s_waitcnt vmcnt(0)')
    for i in range(4):
        A(f'    v_sub_u32 v13, v{9+i}, v{8+i}')
        A(f'    ds_add_u32 v20, v13 offset:{64+4*i}')
        A(f'    ds_max_u32 v20, v13 offset:{96+4*i}')
    for i in range(5):
        A(f'    v_sub_u32 v{8+i}, s10, v{8+i}')
        A(f'    ds_max_u32 v20, v{8+i} offset:{4*i}')
        A(f'    ds_min_u32 v20, v{8+i} offset:{32+4*i}')
    A('    v_add_u32 v3, 1024, v3')
    A('    s_mov_b64 exec, s[14:15]')
    A('    s_branch R_loop')
    A('R_done:')
    A('    s_mov_b64 exec, s[14:15]')
    A('    s_waitcnt lgkmcnt(0)')
    A('    s_barrier')
    A('    v_readfirstlane_b32 s16, v0')
    A('    s_cmp_ge_u32 s16, 64')
    A('    s_cbranch_scc1 R_end')
    A('    ds_read_b128 v[4:7], v20')
    A('    ds_read_b32 v8, v20 offset:16')
    A('    ds_read_b128 v[10:13], v20 offset:32')
    A('    ds_read_b32 v14, v20 offset:48')
    A('    ds_read_b128 v[16:19], v20 offset:64')
    A('    ds_read_b128 v[24:27], v20 offset:96')
    A('    s_waitcnt lgkmcnt(0)')
    regs = []
    A('    v_mov_b32 v28, v4')
    A('    v_sub_u32 v5, v28, v5')
    A('    v_sub_u32 v6, v28, v6')
    A('    v_sub_u32 v7, v28, v7')
    A('    v_sub_u32 v8, v28, v8')
    for r in (10, 11, 12, 13, 14):
        A(f'    v_sub_u32 v{r}, v28, v{r}')
    q = [4, 5, 6, 7, 8, 10, 11, 12, 13, 14, 16, 17, 18, 19, 24, 27]
    A('    s_mov_b64 exec, 1')
    for i, r in enumerate(q):
        A(f'    global_store_dword v20, v{r}, s[4:5] offset:{4*i}')
    A(f'    v_readfirstlane_b32 s20, v{q[sel]}')
    if 10 <= sel <= 13:
        A(f'    v_cvt_f32_u32 v30, v{q[sel]}')
        import struct
        c = struct.unpack('<I', struct.pack('<f', amp/NW))[0]
        A(f'    v_mul_f32 v30, {c:#x}, v30')
        A('    v_cvt_u32_f32 v30, v30')
        A('    s_nop 0')
        A('    v_readfirstlane_b32 s20, v30')
    else:
        A(f'    s_mul_i32 s20, s20, {amp}')
    A('    s_min_u32 s20, s20, 200000')
    A('    s_mov_b32 s24, 0')
    A('R_spin:')
    A('    s_memrealtime s[22:23]')
    A('    s_waitcnt lgkmcnt(0)')
    A('    s_sub_u32 s22, s22, s10')
    A('    s_add_u32 s24, s24, 1')
    A('    s_cmp_ge_u32 s24, 400000')
    A('    s_cbranch_scc1 R_end')
    A('    s_cmp_lt_u32 s22, s20')
    A('    s_cbranch_scc1 R_spin')
    A('R_end:')
    A('    s_endpgm')
    return '\n'.join(L)

if __name__ == '__main__':
    src = open(sys.argv[1]).read()
    amp = int(sys.argv[4]) if len(sys.argv) > 4 else 20
    open(sys.argv[2], 'w').write(diag(src, int(sys.argv[3]), amp))
```

```python
import sys, re
sys.path.insert(0, 'gen')
KN = 'standalone__fused_bias_dropout_add__prompt_kernel'

def diag(src, sel, amp=20):
    m = re.search(r'; @launch grid=\((\d+),1,1\) block=\((\d+),1,1\) lds=(\d+)', src)
    G, B, lds = int(m.group(1)), int(m.group(2)), int(m.group(3))
    wpw = B//64
    NW = G*wpw
    src = src.replace(m.group(0), f'; @launch kernel={KN} grid=({G},1,1) block=({B},1,1) lds={lds}\n; @launch kernel=red_kernel grid=(1,1,1) block=(1024,1,1) lds=256')
    lines = src.split('\n')
    out = []
    nvm = 0
    first_lgkm = True
    last_ld_wait = None
    idx_vm = [i for i, l in enumerate(lines) if 's_waitcnt vmcnt' in l]
    for i, l in enumerate(lines):
        if l.startswith(KN+':'):
            out.append(l)
            out.append('    s_memrealtime s[40:41]')
            out.append('    s_load_dwordx2 s[38:39], s[0:1], 48')
            out.append('    v_lshrrev_b32 v63, 6, v0')
            out.append('    s_nop 0')
            out.append('    v_readfirstlane_b32 s50, v63')
            out.append(f'    s_mul_i32 s51, s2, {wpw}')
            out.append('    s_add_u32 s50, s50, s51')
            out.append('    s_lshl_b32 s50, s50, 5')
            continue
        if 's_waitcnt lgkmcnt(0)' in l and first_lgkm:
            first_lgkm = False
            out.append(l)
            out.append('    s_memrealtime s[42:43]')
            continue
        if i == idx_vm[0]:
            out.append(l)
            out.append('    s_memrealtime s[44:45]')
            if i != idx_vm[-1]:
                continue
            out.append('    s_memrealtime s[46:47]')
            continue
        if i == idx_vm[-1]:
            out.append(l)
            out.append('    s_memrealtime s[46:47]')
            continue
        if l.startswith('L_end:'):
            out.append('    s_waitcnt vmcnt(0)')
            out.append('    s_memrealtime s[48:49]')
            out.append('    s_waitcnt lgkmcnt(0)')
            out.append('    s_mov_b64 exec, 1')
            out.append('    v_mov_b32 v56, s40')
            out.append('    v_mov_b32 v57, s42')
            out.append('    v_mov_b32 v58, s44')
            out.append('    v_mov_b32 v59, s46')
            out.append('    v_mov_b32 v60, s48')
            out.append('    v_mov_b32 v61, s50')
            out.append('    global_store_dwordx4 v61, v[56:59], s[38:39]')
            out.append('    global_store_dword v61, v60, s[38:39] offset:16')
            out.append(l)
            continue
        if l.startswith('.section .rodata'):
            out.append(red(NW, sel, amp))
        l = re.sub(r'next_free_vgpr \d+', lambda mm: 'next_free_vgpr %d' % max(64, int(mm.group(0).split()[1])), l)
        l = re.sub(r'accum_offset \d+', lambda mm: 'accum_offset %d' % max(64, int(mm.group(0).split()[1])), l)
        l = re.sub(r'next_free_sgpr \d+', 'next_free_sgpr 56', l)
        out.append(l)
    out.append('''.amdhsa_kernel red_kernel
  .amdhsa_next_free_vgpr 32
  .amdhsa_next_free_sgpr 40
  .amdhsa_accum_offset 32
  .amdhsa_group_segment_fixed_size 0
  .amdhsa_kernarg_size 56
  .amdhsa_user_sgpr_count 2
  .amdhsa_user_sgpr_kernarg_segment_ptr 1
  .amdhsa_system_sgpr_workgroup_id_x 1
.end_amdhsa_kernel''')
    return '\n'.join(out)+'\n'

def red(NW, sel, amp):
    L = []
    A = L.append
    A('.globl red_kernel')
    A('.p2align 8')
    A('.type red_kernel,@function')
    A('red_kernel:')
    A('    s_memrealtime s[10:11]')
    A('    s_load_dwordx4 s[4:7], s[0:1], 40')
    A('    s_cmp_ge_u32 s2, 1')
    A('    s_cbranch_scc1 R_end')
    A('    v_lshlrev_b32 v1, 2, v0')
    A('    v_mov_b32 v2, 0')
    A('    v_cmp_le_u32 vcc, 8, v0')
    A('    v_cmp_gt_u32 s[12:13], 16, v0')
    A('    s_and_b64 vcc, vcc, s[12:13]')
    A('    s_nop 1')
    A('    v_cndmask_b32 v2, v2, -1, vcc')
    A('    v_cmp_gt_u32 vcc, 64, v0')
    A('    s_and_saveexec_b64 s[14:15], vcc')
    A('    ds_write_b32 v1, v2')
    A('    s_mov_b64 exec, s[14:15]')
    A('    s_waitcnt lgkmcnt(0)')
    A('    s_barrier')
    A('    v_mov_b32 v20, 0')
    A('    v_mov_b32 v3, v0')
    A('R_loop:')
    A(f'    v_cmp_gt_u32 vcc, {NW}, v3')
    A('    s_and_saveexec_b64 s[14:15], vcc')
    A('    s_cbranch_execz R_done')
    A('    v_lshlrev_b32 v4, 5, v3')
    A('    global_load_dwordx4 v[8:11], v4, s[6:7]')
    A('    global_load_dword v12, v4, s[6:7] offset:16')
    A('    s_waitcnt vmcnt(0)')
    for i in range(4):
        A(f'    v_sub_u32 v13, v{9+i}, v{8+i}')
        A(f'    ds_add_u32 v20, v13 offset:{64+4*i}')
        A(f'    ds_max_u32 v20, v13 offset:{96+4*i}')
    for i in range(5):
        A(f'    v_sub_u32 v{8+i}, s10, v{8+i}')
        A(f'    ds_max_u32 v20, v{8+i} offset:{4*i}')
        A(f'    ds_min_u32 v20, v{8+i} offset:{32+4*i}')
    A('    v_add_u32 v3, 1024, v3')
    A('    s_mov_b64 exec, s[14:15]')
    A('    s_branch R_loop')
    A('R_done:')
    A('    s_mov_b64 exec, s[14:15]')
    A('    s_waitcnt lgkmcnt(0)')
    A('    s_barrier')
    A('    v_readfirstlane_b32 s16, v0')
    A('    s_cmp_ge_u32 s16, 64')
    A('    s_cbranch_scc1 R_end')
    A('    ds_read_b128 v[4:7], v20')
    A('    ds_read_b32 v8, v20 offset:16')
    A('    ds_read_b128 v[10:13], v20 offset:32')
    A('    ds_read_b32 v14, v20 offset:48')
    A('    ds_read_b128 v[16:19], v20 offset:64')
    A('    ds_read_b128 v[24:27], v20 offset:96')
    A('    s_waitcnt lgkmcnt(0)')
    regs = []
    A('    v_mov_b32 v28, v4')
    A('    v_sub_u32 v5, v28, v5')
    A('    v_sub_u32 v6, v28, v6')
    A('    v_sub_u32 v7, v28, v7')
    A('    v_sub_u32 v8, v28, v8')
    for r in (10, 11, 12, 13, 14):
        A(f'    v_sub_u32 v{r}, v28, v{r}')
    q = [4, 5, 6, 7, 8, 10, 11, 12, 13, 14, 16, 17, 18, 19, 24, 27]
    A('    s_mov_b64 exec, 1')
    for i, r in enumerate(q):
        A(f'    global_store_dword v20, v{r}, s[4:5] offset:{4*i}')
    A(f'    v_readfirstlane_b32 s20, v{q[max(sel,0)]}')
    if sel < 0:
        A(f'    s_sub_u32 s20, {amp}, s20')
    elif 10 <= sel <= 13:
        A(f'    v_cvt_f32_u32 v30, v{q[sel]}')
        import struct
        c = struct.unpack('<I', struct.pack('<f', amp/NW))[0]
        A(f'    v_mul_f32 v30, {c:#x}, v30')
        A('    v_cvt_u32_f32 v30, v30')
        A('    s_nop 0')
        A('    v_readfirstlane_b32 s20, v30')
    else:
        A(f'    s_mul_i32 s20, s20, {amp}')
    A('    s_min_u32 s20, s20, 200000')
    A('    s_mov_b32 s24, 0')
    A('R_spin:')
    A('    s_memrealtime s[22:23]')
    A('    s_waitcnt lgkmcnt(0)')
    A('    s_sub_u32 s22, s22, s10')
    A('    s_add_u32 s24, s24, 1')
    A('    s_cmp_ge_u32 s24, 400000')
    A('    s_cbranch_scc1 R_end')
    A('    s_cmp_lt_u32 s22, s20')
    A('    s_cbranch_scc1 R_spin')
    A('R_end:')
    A('    s_endpgm')
    return '\n'.join(L)

if __name__ == '__main__':
    src = open(sys.argv[1]).read()
    amp = int(sys.argv[4]) if len(sys.argv) > 4 else 20
    open(sys.argv[2], 'w').write(diag(src, int(sys.argv[3]), amp))
```

```python
import sys, re
KN = 'standalone__fused_bias_dropout_add__prompt_kernel'

def diag(src, mode, val, sreg=40):
    m = re.search(r'; @launch grid=\((\d+),1,1\) block=\((\d+),1,1\) lds=(\d+)', src)
    G, B, lds = int(m.group(1)), int(m.group(2)), int(m.group(3))
    src = src.replace(m.group(0), f'; @launch kernel={KN} grid=({G},1,1) block=({B},1,1) lds={lds}\n; @launch kernel=red_kernel grid=(1,1,1) block=(64,1,1) lds=0')
    nv = int(re.search(r'next_free_vgpr (\d+)', src).group(1))
    lines = src.split('\n')
    out = []
    s = sreg
    for i, l in enumerate(lines):
        if l.startswith(KN+':'):
            out.append(l)
            out.append(f'    s_memrealtime s[{s}:{s+1}]')
            out.append(f'    s_mov_b32 s{s+4}, s2')
            out.append(f'    s_mov_b64 s[{s+6}:{s+7}], s[0:1]')
            out.append(f'    v_readfirstlane_b32 s{s+5}, v0')
            continue
        if l.startswith('L_end:'):
            out.append(f'    s_cmp_lt_u32 s{s+4}, 64')
            out.append('    s_cbranch_scc0 L_end')
            out.append(f'    s_cmp_lt_u32 s{s+5}, 64')
            out.append('    s_cbranch_scc0 L_end')
            out.append(f'    s_load_dwordx2 s[{s+2}:{s+3}], s[{s+6}:{s+7}], 48')
            out.append(f'    s_lshl_b32 s{s+4}, s{s+4}, 2')
            out.append('    s_waitcnt vmcnt(0) lgkmcnt(0)')
            out.append('    s_mov_b64 exec, 1')
            out.append(f'    v_mov_b32 v0, s{s}')
            out.append(f'    v_mov_b32 v1, s{s+4}')
            out.append(f'    global_store_dword v1, v0, s[{s+2}:{s+3}]')
            out.append(l)
            continue
        if l.startswith('.section .rodata'):
            out.append(red(mode, val))
        l = re.sub(r'next_free_sgpr \d+', f'next_free_sgpr {s+8}', l)
        out.append(l)
    out.append('''.amdhsa_kernel red_kernel
  .amdhsa_next_free_vgpr 32
  .amdhsa_next_free_sgpr 40
  .amdhsa_accum_offset 32
  .amdhsa_group_segment_fixed_size 0
  .amdhsa_kernarg_size 56
  .amdhsa_user_sgpr_count 2
  .amdhsa_user_sgpr_kernarg_segment_ptr 1
  .amdhsa_system_sgpr_workgroup_id_x 1
.end_amdhsa_kernel''')
    return '\n'.join(out)+'\n'

def red(mode, val):
    L = []
    A = L.append
    A('.globl red_kernel')
    A('.p2align 8')
    A('.type red_kernel,@function')
    A('red_kernel:')
    A('    s_memrealtime s[10:11]')
    A('    s_load_dwordx4 s[4:7], s[0:1], 40')
    A('    s_cmp_ge_u32 s2, 1')
    A('    s_cbranch_scc1 R_end')
    A('    v_lshlrev_b32 v1, 2, v0')
    A('    s_waitcnt lgkmcnt(0)')
    A('    global_load_dword v2, v1, s[6:7]')
    A('    s_waitcnt vmcnt(0)')
    A('    v_sub_u32 v2, s10, v2')
    A('    global_store_dword v1, v2, s[4:5]')
    A('    s_mov_b32 s20, 0')
    for i in range(64):
        A(f'    v_readlane_b32 s21, v2, {i}')
        A('    s_max_u32 s20, s20, s21')
    if mode == 'amp':
        A(f'    s_mul_i32 s20, s20, {val}')
    else:
        A(f'    s_sub_u32 s20, {val}, s20')
    A('    s_min_u32 s20, s20, 200000')
    A('    s_mov_b32 s24, 0')
    A('R_spin:')
    A('    s_memrealtime s[22:23]')
    A('    s_waitcnt lgkmcnt(0)')
    A('    s_sub_u32 s22, s22, s10')
    A('    s_add_u32 s24, s24, 1')
    A('    s_cmp_ge_u32 s24, 400000')
    A('    s_cbranch_scc1 R_end')
    A('    s_cmp_lt_u32 s22, s20')
    A('    s_cbranch_scc1 R_spin')
    A('R_end:')
    A('    s_endpgm')
    return '\n'.join(L)

if __name__ == '__main__':
    src = open(sys.argv[1]).read()
    open(sys.argv[2], 'w').write(diag(src, sys.argv[3], int(sys.argv[4])))
```

```python
import sys, re
sys.path.insert(0, 'gen')
from diag2 import red, KN
def diag(src, GA, BA, val, nst=0):
    m = re.search(r'; @launch grid=\((\d+),1,1\) block=\((\d+),1,1\) lds=(\d+)', src)
    G, B, lds = int(m.group(1)), int(m.group(2)), int(m.group(3))
    src = src.replace(m.group(0), f'; @launch kernel={KN} grid=({G},1,1) block=({B},1,1) lds={lds}\n; @launch kernel=sta_kernel grid=({GA},1,1) block=({BA},1,1) lds=0\n; @launch kernel=red_kernel grid=(1,1,1) block=(64,1,1) lds=0')
    out = []
    for l in src.split('\n'):
        if l.startswith('.section .rodata'):
            A = out.append
            A('.globl sta_kernel'); A('.p2align 8'); A('.type sta_kernel,@function'); A('sta_kernel:')
            A('    s_memrealtime s[10:11]')
            A('    s_load_dwordx2 s[6:7], s[0:1], 48')
            A('    v_readfirstlane_b32 s5, v0')
            if nst:
                A(f'    s_cmp_ge_u32 s2, {GA}')
                A('    s_cbranch_scc1 S_end')
                A(f'    s_mul_i32 s3, s2, {BA*16}')
                A('    v_lshl_add_u32 v1, v0, 4, s3')
                A('    v_add_u32 v1, 0x100000, v1')
                A('    v_mov_b32 v4, 0'); A('    v_mov_b32 v5, 0'); A('    v_mov_b32 v6, 0'); A('    v_mov_b32 v7, 0')
                A('    s_waitcnt lgkmcnt(0)')
                A('    global_store_dwordx4 v1, v[4:7], s[6:7]')
            A('    s_cmp_lt_u32 s2, 64')
            A('    s_cbranch_scc0 S_end')
            A('    s_cmp_lt_u32 s5, 64')
            A('    s_cbranch_scc0 S_end')
            A('    s_lshl_b32 s4, s2, 2')
            A('    s_waitcnt lgkmcnt(0)')
            A('    s_mov_b64 exec, 1')
            A('    v_mov_b32 v0, s10')
            A('    v_mov_b32 v1, s4')
            A('    global_store_dword v1, v0, s[6:7]')
            A('S_end:')
            A('    s_endpgm')
            A(red('amp', val))
        out.append(l)
    for k in ('sta_kernel', 'red_kernel'):
        out.append(f'''.amdhsa_kernel {k}
  .amdhsa_next_free_vgpr 32
  .amdhsa_next_free_sgpr 40
  .amdhsa_accum_offset 32
  .amdhsa_group_segment_fixed_size 0
  .amdhsa_kernarg_size 56
  .amdhsa_user_sgpr_count 2
  .amdhsa_user_sgpr_kernarg_segment_ptr 1
  .amdhsa_system_sgpr_workgroup_id_x 1
.end_amdhsa_kernel''')
    return '\n'.join(out)+'\n'
if __name__ == '__main__':
    src = open(sys.argv[1]).read()
    open(sys.argv[2], 'w').write(diag(src, int(sys.argv[3]), int(sys.argv[4]), 99, int(sys.argv[5])))
```

```python
import sys, re
sys.path.insert(0, 'gen')
from diag2 import red, KN
def parts(src):
    body = src.split(KN+':\n')[1].split('.section .rodata')[0]
    desc = src.split('.amdhsa_kernel '+KN)[1].split('.end_amdhsa_kernel')[0]
    m = re.search(r'; @launch grid=\((\d+),1,1\) block=\((\d+),1,1\) lds=(\d+)', src)
    return body, desc, (int(m.group(1)), int(m.group(2)), int(m.group(3)))
def diag(probe, main, val, s=40):
    pb, pd, (G, B, lds) = parts(probe)
    mb, md, (G2, B2, lds2) = parts(main)
    hdr = main.split('; @launch')[0]
    o = [hdr.rstrip('\n')]
    A = o.append
    A(f'; @launch kernel=prb_kernel grid=({G},1,1) block=({B},1,1) lds={lds}')
    A('; @launch kernel=red_kernel grid=(1,1,1) block=(64,1,1) lds=0')
    A(f'; @launch kernel={KN} grid=({G2},1,1) block=({B2},1,1) lds={lds2}')
    A('.amdgcn_target "amdgcn-amd-amdhsa--gfx950"')
    A('.text')
    A('.globl prb_kernel'); A('.p2align 8'); A('.type prb_kernel,@function'); A('prb_kernel:')
    A(f'    s_memrealtime s[{s}:{s+1}]')
    A(f'    s_mov_b32 s{s+4}, s2')
    A(f'    s_mov_b64 s[{s+6}:{s+7}], s[0:1]')
    A(f'    v_readfirstlane_b32 s{s+5}, v0')
    pb = re.sub(r'\bL_(\w+)', r'P_\1', pb)
    for l in pb.split('\n'):
        if l.startswith('P_end:'):
            A(f'    s_cmp_lt_u32 s{s+4}, 64')
            A('    s_cbranch_scc0 P_end')
            A(f'    s_cmp_lt_u32 s{s+5}, 64')
            A('    s_cbranch_scc0 P_end')
            A(f'    s_load_dwordx2 s[{s+2}:{s+3}], s[{s+6}:{s+7}], 48')
            A(f'    s_lshl_b32 s{s+4}, s{s+4}, 2')
            A('    s_waitcnt vmcnt(0) lgkmcnt(0)')
            A('    s_mov_b64 exec, 1')
            A(f'    v_mov_b32 v0, s{s}')
            A(f'    v_mov_b32 v1, s{s+4}')
            A(f'    global_store_dword v1, v0, s[{s+2}:{s+3}]')
        A(l)
    A(red('amp', val))
    A(f'.globl {KN}'); A('.p2align 8'); A(f'.type {KN},@function'); A(f'{KN}:')
    A(mb)
    A('.section .rodata,"a"'); A('.p2align 6')
    A('.amdhsa_kernel prb_kernel' + re.sub(r'next_free_sgpr \d+', f'next_free_sgpr {s+8}', pd) + '.end_amdhsa_kernel')
    A('''.amdhsa_kernel red_kernel
  .amdhsa_next_free_vgpr 32
  .amdhsa_next_free_sgpr 40
  .amdhsa_accum_offset 32
  .amdhsa_group_segment_fixed_size 0
  .amdhsa_kernarg_size 56
  .amdhsa_user_sgpr_count 2
  .amdhsa_user_sgpr_kernarg_segment_ptr 1
  .amdhsa_system_sgpr_workgroup_id_x 1
.end_amdhsa_kernel''')
    A(f'.amdhsa_kernel {KN}' + md + '.end_amdhsa_kernel')
    return '\n'.join(o)+'\n'
if __name__ == '__main__':
    open(sys.argv[2], 'w').write(diag(open(sys.argv[1]).read(), open('n1_1.s').read(), 99))
```

```python
import sys, re
KN = 'standalone__fused_bias_dropout_add__prompt_kernel'
dst, mode = sys.argv[1], sys.argv[2]
main = open('a_b448_k1.s').read()
m = re.search(r'; @launch grid=\((\d+),1,1\) block=\((\d+),1,1\) lds=(\d+)', main)
lp = '; @launch kernel=ft_kernel grid=(1,1,1) block=(64,1,1) lds=0'
lm = f'; @launch kernel={KN} grid=(1024,1,1) block=(448,1,1) lds=0'
main = main.replace(m.group(0), lp+'\n'+lm)
T0 = ['    s_memrealtime s[20:21]', '    s_waitcnt lgkmcnt(0)']
T1 = ['    s_memrealtime s[22:23]', '    s_waitcnt lgkmcnt(0)']
KA8 = ['    s_load_dwordx8 s[4:11], s[0:1], 0']
KA2 = ['    s_load_dwordx2 s[12:13], s[0:1], 32']
W = ['    s_waitcnt vmcnt(0) lgkmcnt(0)']
c = ['.globl ft_kernel', '.p2align 8', '.type ft_kernel,@function', 'ft_kernel:',
     '    s_cmp_ge_u32 s2, 1', '    s_cbranch_scc1 Q_end', '    v_lshlrev_b32 v1, 4, v0', '    v_mov_b32 v4, 0', '    v_mov_b32 v5, 0', '    v_mov_b32 v6, 0', '    v_mov_b32 v7, 0']
if mode == 'nul':
    c += T0 + T1
elif mode == 'ka8':
    c += T0 + KA8 + W + T1
elif mode == 'ka82':
    c += T0 + KA8 + KA2 + W + T1
elif mode == 'ldx':
    c += KA8 + KA2 + W + T0 + ['    global_load_dwordx4 v[4:7], v1, s[4:5] nt'] + W + T1
elif mode == 'ldx2':
    c += KA8 + KA2 + W + ['    global_load_dwordx4 v[4:7], v1, s[4:5] nt'] + W + ['    v_add_u32 v1, 0x10000, v1'] + T0 + ['    global_load_dwordx4 v[4:7], v1, s[4:5] nt'] + W + T1
elif mode == 'ldxp':
    c += KA8 + KA2 + W + ['    global_load_dwordx4 v[4:7], v1, s[4:5] nt'] + W + ['    v_add_u32 v1, 0x400000, v1'] + T0 + ['    global_load_dwordx4 v[4:7], v1, s[4:5] nt'] + W + T1
elif mode == 'ldm':
    c += KA8 + KA2 + W + ['    global_load_dwordx4 v[4:7], v1, s[4:5] nt'] + W + T0 + ['    global_load_dwordx4 v[4:7], v1, s[8:9] nt'] + W + T1
elif mode == 'sto':
    c += KA8 + KA2 + W + ['    global_load_dwordx4 v[4:7], v1, s[4:5] nt'] + W + T0 + ['    global_store_dwordx4 v1, v[4:7], s[12:13]'] + W + T1
elif mode == 'sto2':
    c += KA8 + KA2 + W + ['    global_store_dwordx4 v1, v[4:7], s[12:13]'] + W + ['    v_add_u32 v1, 0x10000, v1'] + T0 + ['    global_store_dwordx4 v1, v[4:7], s[12:13]'] + W + T1
elif mode == 'stw':
    c += KA8 + KA2 + W + ['    global_load_dwordx4 v[4:7], v1, s[4:5] nt'] + W + T0 + ['    global_store_dwordx4 v1, v[4:7], s[12:13] sc1'] + W + T1
elif mode == 'stw2':
    c += KA8 + KA2 + W + ['    global_store_dwordx4 v1, v[4:7], s[12:13] sc1'] + W + ['    v_add_u32 v1, 0x10000, v1'] + T0 + ['    global_store_dwordx4 v1, v[4:7], s[12:13] sc1'] + W + T1
else:
    raise SystemExit('mode')
c += ['    s_sub_u32 s24, s22, s20', '    s_mul_i32 s24, s24, 100', '    s_min_u32 s24, s24, 100000', '    s_mov_b32 s25, 0',
      'Q_spin:', '    s_memrealtime s[26:27]', '    s_waitcnt lgkmcnt(0)', '    s_sub_u32 s26, s26, s22', '    s_add_u32 s25, s25, 1',
      '    s_cmp_ge_u32 s25, 400000', '    s_cbranch_scc1 Q_end', '    s_cmp_lt_u32 s26, s24', '    s_cbranch_scc1 Q_spin',
      'Q_end:', '    s_endpgm']
main = main.replace('.section .rodata', '\n'.join(c)+'\n.section .rodata')
main += '''.amdhsa_kernel ft_kernel
  .amdhsa_next_free_vgpr 8
  .amdhsa_next_free_sgpr 32
  .amdhsa_accum_offset 8
  .amdhsa_group_segment_fixed_size 0
  .amdhsa_kernarg_size 56
  .amdhsa_user_sgpr_count 2
  .amdhsa_user_sgpr_kernarg_segment_ptr 1
  .amdhsa_system_sgpr_workgroup_id_x 1
.end_amdhsa_kernel
'''
open(dst, 'w').write(main)
```

```python
import sys, re
KN = 'standalone__fused_bias_dropout_add__prompt_kernel'
dst, mode = sys.argv[1], sys.argv[2]
main = open('a_b448_k1.s').read()
m = re.search(r'; @launch grid=\((\d+),1,1\) block=\((\d+),1,1\) lds=(\d+)', main)
lp = '; @launch kernel=ft_kernel grid=(1,1,1) block=(64,1,1) lds=0'
lm = f'; @launch kernel={KN} grid=(1024,1,1) block=(448,1,1) lds=0'
main = main.replace(m.group(0), lp+'\n'+lm)
T0 = ['    s_memrealtime s[20:21]', '    s_waitcnt lgkmcnt(0)']
T1 = ['    s_memrealtime s[22:23]', '    s_waitcnt lgkmcnt(0)']
KA8 = ['    s_load_dwordx8 s[4:11], s[0:1], 0']
KA2 = ['    s_load_dwordx2 s[12:13], s[0:1], 32']
W = ['    s_waitcnt vmcnt(0) lgkmcnt(0)']
c = ['.globl ft_kernel', '.p2align 8', '.type ft_kernel,@function', 'ft_kernel:',
     '    s_cmp_ge_u32 s2, 1', '    s_cbranch_scc1 Q_end', '    v_lshlrev_b32 v1, 4, v0', '    v_mov_b32 v4, 0', '    v_mov_b32 v5, 0', '    v_mov_b32 v6, 0', '    v_mov_b32 v7, 0']
if mode == 'nul':
    c += T0 + T1
elif mode == 'ka8':
    c += T0 + KA8 + W + T1
elif mode == 'ka82':
    c += T0 + KA8 + KA2 + W + T1
elif mode == 'ka4':
    c += T0 + ['    s_load_dwordx4 s[4:7], s[0:1], 0'] + W + T1
elif mode == 'ka2a':
    c += KA8 + W + T0 + KA2 + W + T1
elif mode == 'ka8a':
    c += KA8 + W + T0 + KA8 + W + T1
elif mode == 'ka28':
    c += T0 + KA2 + KA8 + W + T1
elif mode == 'ka88':
    c += T0 + KA8 + ['    s_load_dwordx8 s[12:19], s[0:1], 0'] + W + T1
elif mode == 'ka2222':
    c += T0 + ['    s_load_dwordx2 s[4:5], s[0:1], 0', '    s_load_dwordx2 s[6:7], s[0:1], 8', '    s_load_dwordx2 s[8:9], s[0:1], 16', '    s_load_dwordx2 s[10:11], s[0:1], 24'] + W + T1
elif mode == 'kaadr':
    c += T0 + T1 + ['    s_and_b32 s20, s0, 0xff', '    s_lshr_b32 s20, s20, 2', '    s_sub_u32 s20, s22, s20']
elif mode == 'ldx':
    c += KA8 + KA2 + W + T0 + ['    global_load_dwordx4 v[4:7], v1, s[4:5] nt'] + W + T1
elif mode == 'ldx2':
    c += KA8 + KA2 + W + ['    global_load_dwordx4 v[4:7], v1, s[4:5] nt'] + W + ['    v_add_u32 v1, 0x10000, v1'] + T0 + ['    global_load_dwordx4 v[4:7], v1, s[4:5] nt'] + W + T1
elif mode == 'ldxp':
    c += KA8 + KA2 + W + ['    global_load_dwordx4 v[4:7], v1, s[4:5] nt'] + W + ['    v_add_u32 v1, 0x400000, v1'] + T0 + ['    global_load_dwordx4 v[4:7], v1, s[4:5] nt'] + W + T1
elif mode == 'ldm':
    c += KA8 + KA2 + W + ['    global_load_dwordx4 v[4:7], v1, s[4:5] nt'] + W + T0 + ['    global_load_dwordx4 v[4:7], v1, s[8:9] nt'] + W + T1
elif mode == 'sto':
    c += KA8 + KA2 + W + ['    global_load_dwordx4 v[4:7], v1, s[4:5] nt'] + W + T0 + ['    global_store_dwordx4 v1, v[4:7], s[12:13]'] + W + T1
elif mode == 'sto2':
    c += KA8 + KA2 + W + ['    global_store_dwordx4 v1, v[4:7], s[12:13]'] + W + ['    v_add_u32 v1, 0x10000, v1'] + T0 + ['    global_store_dwordx4 v1, v[4:7], s[12:13]'] + W + T1
elif mode == 'stw':
    c += KA8 + KA2 + W + ['    global_load_dwordx4 v[4:7], v1, s[4:5] nt'] + W + T0 + ['    global_store_dwordx4 v1, v[4:7], s[12:13] sc1'] + W + T1
elif mode == 'stw2':
    c += KA8 + KA2 + W + ['    global_store_dwordx4 v1, v[4:7], s[12:13] sc1'] + W + ['    v_add_u32 v1, 0x10000, v1'] + T0 + ['    global_store_dwordx4 v1, v[4:7], s[12:13] sc1'] + W + T1
else:
    raise SystemExit('mode')
c += ['    s_sub_u32 s24, s22, s20', '    s_mul_i32 s24, s24, 100', '    s_min_u32 s24, s24, 100000', '    s_mov_b32 s25, 0',
      'Q_spin:', '    s_memrealtime s[26:27]', '    s_waitcnt lgkmcnt(0)', '    s_sub_u32 s26, s26, s22', '    s_add_u32 s25, s25, 1',
      '    s_cmp_ge_u32 s25, 400000', '    s_cbranch_scc1 Q_end', '    s_cmp_lt_u32 s26, s24', '    s_cbranch_scc1 Q_spin',
      'Q_end:', '    s_endpgm']
main = main.replace('.section .rodata', '\n'.join(c)+'\n.section .rodata')
main += '''.amdhsa_kernel ft_kernel
  .amdhsa_next_free_vgpr 8
  .amdhsa_next_free_sgpr 32
  .amdhsa_accum_offset 8
  .amdhsa_group_segment_fixed_size 0
  .amdhsa_kernarg_size 56
  .amdhsa_user_sgpr_count 2
  .amdhsa_user_sgpr_kernarg_segment_ptr 1
  .amdhsa_system_sgpr_workgroup_id_x 1
.end_amdhsa_kernel
'''
open(dst, 'w').write(main)
```
